```python
import torch

def _softmax(x, axis=-1):
    return torch.softmax(x, dim=axis)
def _gelu(x):
    return torch.nn.functional.gelu(x, approximate="tanh")
def _silu(x):
    return torch.nn.functional.silu(x)
def _sigmoid(x):
    return torch.sigmoid(x)
def _layernorm(x, axis=-1, eps=1e-5):
    m = x.mean(dim=axis, keepdim=True)
    v = x.var(dim=axis, keepdim=True, unbiased=False)
    return (x - m) / torch.sqrt(v + eps)
def _scatter_add(tgt, idx, src, axis=0):
    return tgt.clone().index_add_(axis, idx, src)
def _segment_sum(src, seg, n):
    out = torch.zeros((n,) + src.shape[1:], dtype=src.dtype)
    return out.index_add_(0, seg, src)
def _pad(x, pw):
    flat = tuple(v for pair in reversed(pw) for v in pair)
    return torch.nn.functional.pad(x, flat)

kernel_name = 'gated_mix__ssm_conv_s4__dense_activation_relu__prompt'

def setup_inputs():

    _w = (lambda a: (lambda t: t.to(torch.bfloat16) if t.is_floating_point() else t)(torch.as_tensor(a)))
    def _A_setup():
        B, L, D, N = 1, 2048, 512, 128
        A_re = -(lambda _x: torch.exp(torch.as_tensor(_x)))((lambda *s: torch.randn(*s, dtype=torch.bfloat16) * 3.2)(D, N))
        A_im = torch.pi * (lambda *s: torch.randn(*s, dtype=torch.bfloat16) * 0.2)(D, N)
        B_re = (lambda *s: torch.randn(*s, dtype=torch.bfloat16) * 0.4)(D, N)
        B_im = (lambda *s: torch.randn(*s, dtype=torch.bfloat16) * 0.4)(D, N)
        C_re = (lambda *s: torch.randn(*s, dtype=torch.bfloat16) * 0.4)(D, N)
        C_im = (lambda *s: torch.randn(*s, dtype=torch.bfloat16) * 0.4)(D, N)
        log_dt = (lambda *s: torch.randn(*s, dtype=torch.bfloat16) * 0.2)(D) * 0.5 - 4.0
        Dskip = (lambda *s: torch.randn(*s, dtype=torch.bfloat16) * 0.4)(D)
        return {
            "u": _w((lambda *s: torch.randn(*s, dtype=torch.bfloat16) * 0.05)(B, L, D)),
            "A_re": _w(A_re),
            "A_im": _w(A_im),
            "B_re": _w(B_re),
            "B_im": _w(B_im),
            "C_re": _w(C_re),
            "C_im": _w(C_im),
            "log_dt": _w(log_dt),
            "Dskip": _w(Dskip),
        }
    _A_in = _A_setup()

    def _B_setup():
        B, S, D, Dff = 1, 2048, 512, 1792
        return {
            "x": _w((lambda *s: torch.randn(*s, dtype=torch.bfloat16) * 0.05)(B, S, D)),
            "w1": _w((lambda *s: torch.randn(*s, dtype=torch.bfloat16) * 0.05)(D, Dff)),
            "w2": _w((lambda *s: torch.randn(*s, dtype=torch.bfloat16) * 0.05)(Dff, D)),
        }
    _B_in = _B_setup()

    return {
        "A_u": _A_in["u"],
        "A_A_re": _A_in["A_re"],
        "A_A_im": _A_in["A_im"],
        "A_B_re": _A_in["B_re"],
        "A_B_im": _A_in["B_im"],
        "A_C_re": _A_in["C_re"],
        "A_C_im": _A_in["C_im"],
        "A_log_dt": _A_in["log_dt"],
        "A_Dskip": _A_in["Dskip"],
        "B_x": _B_in["x"],
        "B_w1": _B_in["w1"],
        "B_w2": _B_in["w2"],
        "gate_w": _w((lambda *s: torch.randn(*s, dtype=torch.bfloat16) * 0.05)(512) * 16.0),
    }

def reference(A_u, A_A_re, A_A_im, A_B_re, A_B_im, A_C_re, A_C_im, A_log_dt, A_Dskip, B_x, B_w1, B_w2, gate_w):
    def _A_ref(u, A_re, A_im, B_re, B_im, C_re, C_im, log_dt, Dskip):
        Bsz, L, D = u.shape
        dt = torch.exp(log_dt)[:, None]
        A = A_re + 1j * A_im
        Bc = B_re + 1j * B_im
        Cc = C_re + 1j * C_im
        logdA = dt * A
        dB = dt * Bc
        l = (lambda x, dt: x.to(dt))(torch.arange(L), A_re.dtype)
        P = torch.exp(logdA[:, :, None] * l[None, None, :])
        K = torch.einsum("dn,dnl,dn->dl", Cc, P, dB).real
        L2 = 2 * L
        Kp = _pad(K, ((0, 0), (0, L)))
        up = (lambda x, *d: x.permute(*d))(u, 0, 2, 1)
        up = _pad(up, ((0, 0), (0, 0), (0, L)))
        Kf = (lambda x, axes=(-2,-1): torch.fft.rfft2(x.float(), dim=axes))(Kp[:, None, :], axes=(-2, -1))
        Uf = (lambda x, axes=(-2,-1): torch.fft.rfft2(x.float(), dim=axes))(up[:, :, None, :], axes=(-2, -1))
        Yf = Uf * Kf[None, :, :, :]
        y = (lambda x, s, axes=(-2,-1): torch.fft.irfft2(x, s=s, dim=axes).to(torch.bfloat16))(Yf, (1, L2), axes=(-2, -1))[:, :, 0, :L]
        y = (lambda x, *d: x.permute(*d))(y, 0, 2, 1) + u * Dskip[None, None, :]
        return y

    def _B_ref(x, w1, w2):
        h = torch.einsum("bsd,df->bsf", x, w1)
        zero = torch.zeros_like(h)
        h = torch.maximum(h, zero)
        return torch.einsum("bsf,fd->bsd", h, w2)

    x = A_u
    g = _sigmoid((x * gate_w).sum(-1, keepdims=True))
    a = _A_ref(x, A_A_re, A_A_im, A_B_re, A_B_im, A_C_re, A_C_im, A_log_dt, A_Dskip)
    b = _B_ref(x, B_w1, B_w2)
    return g * a + (1 - g) * b
```

```python
import re

TRANS = ("v_exp_f32", "v_log_f32", "v_rcp_f32", "v_rsq_f32", "v_sqrt_f32", "v_sin_f32", "v_cos_f32", "v_rcp_iflag_f32")

def v(n): return f"v{n}"
def s(n): return f"s{n}"
def vr(n, c): return f"v[{n}:{n+c-1}]" if c > 1 else f"v{n}"
def sr(n, c): return f"s[{n}:{n+c-1}]" if c > 1 else f"s{n}"

_reg = re.compile(r"(?<![\w.])(v|s|a)(?:(\d+)|\[(\d+):(\d+)\])(?![\w])")

def regs_of(op):
    out = set()
    op = op.strip()
    for m in _reg.finditer(op):
        k = m.group(1)
        if m.group(2) is not None:
            out.add((k, int(m.group(2))))
        else:
            for i in range(int(m.group(3)), int(m.group(4)) + 1):
                out.add((k, i))
    if re.search(r"\bvcc(_lo|_hi)?\b", op): out.add(("vcc", 0))
    if re.search(r"\bm0\b", op): out.add(("m0", 0))
    if re.search(r"\bexec(_lo|_hi)?\b", op): out.add(("exec", 0))
    return out

def split_ops(rest):
    ops, depth, cur = [], 0, ""
    for ch in rest:
        if ch == "[": depth += 1
        if ch == "]": depth -= 1
        if ch == "," and depth == 0:
            ops.append(cur.strip()); cur = ""
        else:
            cur += ch
    if cur.strip(): ops.append(cur.strip())
    return ops

class Ins:
    def __init__(self, text):
        self.text = text
        t = text.split(";")[0].strip()
        self.mn, _, rest = t.partition(" ")
        mn = self.mn
        ops = split_ops(rest)
        self.mods = ""
        if ops:
            last = ops[-1]
            m = re.match(r"^(-?\|?(?:abs\()?[\w.\[\]:+\-]+\)?\|?)(\s+.*)?$", last)
            if m:
                ops[-1] = m.group(1); self.mods = (m.group(2) or "")
        self.ops = ops
        self.w = set(); self.r = set()
        self.is_mfma = mn.startswith("v_mfma")
        self.is_valu = mn.startswith("v_") and not self.is_mfma
        self.is_salu = mn.startswith("s_")
        self.is_ds = mn.startswith("ds_")
        self.is_vmem = mn.startswith("buffer_") or mn.startswith("global_")
        self.is_trans = any(mn.startswith(x) for x in TRANS)
        self.is_dpp = "_dpp" in mn or "quad_perm" in text or "row_" in self.mods
        self.is_perml = mn.startswith("v_permlane")
        self.is_rl = mn.startswith("v_readfirstlane") or mn.startswith("v_readlane")
        self.lds_dma = self.is_vmem and re.search(r"\blds\b", self.mods) is not None
        self.states = 1
        R = [regs_of(o) for o in ops]
        allr = lambda xs: set().union(*xs) if xs else set()
        if mn == "s_nop":
            self.states = int(ops[0], 0) + 1
        elif self.is_mfma:
            self.w = R[0]; self.A = R[1]; self.B = R[2]; self.C = R[3] if len(R) > 3 else set()
            self.r = allr(R[1:])
            self.passes = 8 if "32x32x16" in mn else 4 if "16x16x32" in mn else None
            assert self.passes, mn
        elif self.is_valu:
            if self.is_perml:
                self.w = allr(R); self.r = allr(R)
            elif "_co_" in mn:
                self.w = R[0] | R[1]; self.r = allr(R[2:])
            else:
                self.w = R[0]; self.r = allr(R[1:])
                if mn.startswith(("v_fmac", "v_dot2c", "v_writelane", "v_pk_fmac")) or self.is_dpp:
                    self.r |= R[0]
        elif self.is_ds:
            if mn.startswith("ds_read") or "_rtn" in mn or "permute" in mn or "swizzle" in mn:
                self.w = R[0]; self.r = allr(R[1:])
            else:
                self.r = allr(R)
        elif self.is_vmem:
            if "_load" in mn and not self.lds_dma:
                self.w = R[0]; self.r = allr(R[1:])
            else:
                self.r = allr(R)
            if self.lds_dma: self.r.add(("m0", 0))
            self.wide_store = ("store_dwordx4" in mn or "store_dwordx3" in mn)
            if self.wide_store:
                self.sdata = R[0] if mn.startswith("buffer_") else R[1]
        elif self.is_salu:
            if mn.startswith(("s_cmp", "s_cbranch", "s_branch", "s_waitcnt", "s_barrier", "s_endpgm", "s_sleep", "s_setprio", "s_setpc", "s_bitcmp")):
                self.r = allr(R)
            else:
                self.w = R[0] if R else set(); self.r = allr(R[1:])
                if "saveexec" in mn: self.w = self.w | {("exec", 0)}

def need(p, c):
    n = 0
    vg = lambda X: {x for x in X if x[0] in ("v", "a")}
    sg = lambda X: {x for x in X if x[0] in ("s", "vcc")}
    if p.is_valu:
        pw = vg(p.w)
        if c.is_mfma and pw & c.r: n = max(n, 2)
        if c.is_rl and pw & c.r: n = max(n, 1)
        if c.is_perml and pw & c.r: n = max(n, 2)
        if c.is_valu and c.is_dpp and pw & c.r: n = max(n, 2)
        if p.is_trans and c.is_valu and not c.is_trans and pw & c.r: n = max(n, 1)
        if p.is_trans and (c.is_ds or c.is_vmem) and pw & c.r: n = max(n, 1)
        ps = sg(p.w)
        if ps:
            if c.is_valu and ps & c.r:
                n = max(n, 4 if c.mn.startswith(("v_readlane", "v_writelane")) else 2)
            if c.is_vmem and ps & c.r: n = max(n, 5)
            if c.is_salu and ps & c.r: n = max(n, 1)
    if p.is_mfma:
        big = 12 if p.passes == 8 else 8
        if c.is_mfma:
            if p.w & (c.A | c.B): n = max(n, big)
            if p.w & c.C and not (p.w == c.C and p.passes == c.passes): n = max(n, big - 2)
            if p.w & c.w and not (p.w == c.w and p.w == c.C): n = max(n, big)
        elif c.is_valu or c.is_ds or c.is_vmem:
            if p.w & (c.r | c.w): n = max(n, big)
            if c.is_valu and p.C & c.w: n = max(n, 7 if p.passes == 8 else 3)
    if p.is_salu and ("m0", 0) in p.w and c.lds_dma: n = max(n, 1)
    if p.is_vmem and getattr(p, "wide_store", False) and (p.sdata & c.w): n = max(n, 2)
    return n

class Asm:
    def __init__(self):
        self.items = []
        self.uid = 0
    def __call__(self, txt):
        for ln in txt.split("\n"):
            ln = ln.strip()
            if ln: self.items.append(ln)
    def lab(self, base="L"):
        self.uid += 1
        return f"{base}_{self.uid}"
    def finish(self):
        out = []; hist = []
        nn = 0
        for ln in self.items:
            if ln.startswith((";", ".")) or ln.endswith(":"):
                out.append(ln); continue
            c = Ins(ln)
            req = 0; dist = 0
            for p in reversed(hist):
                req = max(req, need(p, c) - dist)
                dist += p.states
                if dist >= 13: break
            if req > 0:
                nop = Ins(f"s_nop {req-1}")
                out.append(nop.text); hist.append(nop); nn += 1
            out.append(ln); hist.append(c)
            if c.mn in ("s_branch", "s_endpgm", "s_setpc_b64"): hist = []
            if len(hist) > 32: hist = hist[-16:]
        self.nops = nn
        return out

class Cnt:
    def __init__(self, A, name, mx):
        self.A = A; self.name = name; self.mx = mx; self.q = []
    def issue(self, tag=None):
        self.q.append(tag)
    def wait(self, tag):
        idx = [i for i, t in enumerate(self.q) if t == tag]
        if not idx: return
        i = idx[-1]
        n = len(self.q) - 1 - i
        n = min(n, self.mx)
        self.A(f"s_waitcnt {self.name}({n})")
        self.q = self.q[len(self.q) - n:] if n else []
    def wait_all(self):
        self.A(f"s_waitcnt {self.name}(0)"); self.q = []
    def clear(self): self.q = []
```

```python
import sys
from asmlib import *

NAME = "gated_mix__ssm_conv_s4__dense_activation_relu__prompt"
PROF = "--prof" in sys.argv

WS_EPOCH = 0x0
WS_HFLAG = 0x1000
WS_UFLAG = 0x2000
WS_AFLAG = 0x3000
WS_GP    = 0x10000
WS_PROF  = 0x40000
WS_UT    = 0x100000
WS_AT    = 0x300000
WS_HP    = 0x600000
WS_SIZE  = 0x1000000

SLOT = 32768
AUX = 131072
KCOP = AUX; KCH = 8704; KC1 = 4160
UBUF = AUX + 2 * KCH; UCH = 4608
KC = UBUF + 2 * UCH; KCCH = 1408
FLAGS = KC + 2 * KCCH
F_RDY = FLAGS; F_FREE = FLAGS + 16; F_CRDY = FLAGS + 32; F_CDONE = FLAGS + 48
OMG = FLAGS + 64
PA = UBUF
assert OMG + 256 <= 163840 and FLAGS % 64 == 0
TRS = 272

S_WAVE = 3
S_XCD, S_LOC, S_MT, S_FC, S_T, S_C, S_J, S_ROT1, S_ROT2, S_TAG, S_HAS1 = 4, 5, 6, 7, 8, 9, 10, 11, 12, 13, 14
P_U, P_ARE, P_AIM, P_BRE, P_BIM, P_CRE, P_CIM, P_LDT = 16, 18, 20, 22, 24, 26, 28, 30
P_DSK, P_BX, P_W1, P_W2, P_GW, P_OUT, P_DBG, P_WS = 32, 34, 36, 38, 40, 42, 44, 46
R_A, R_B, R_WS, R_OUT = 48, 52, 56, 60
S_T0, S_T1, S_T2, S_T3, S_T4, S_T5 = 64, 65, 66, 67, 68, 69
S_BND = 70
S_EX = 72
S_EPO = 74
S_ST = 76
SPIN = 0x10000

A = Asm()
slow = []

def srd(r, p, nbytes):
    A(f"s_mov_b32 s{r}, s{p}\ns_mov_b32 s{r+1}, s{p+1}\ns_mov_b32 s{r+2}, {nbytes:#x}\ns_mov_b32 s{r+3}, 0x20000")

NST = [0]
def stamp():
    if PROF:
        k = NST[0]; NST[0] += 1
        assert k < 12
        A(f"s_memtime s[{S_ST+2*k}:{S_ST+2*k+1}]")
def stamp_reset():
    NST[0] = 1
def stamp_flush(vt0, vt1):
    if not PROF: return
    A("s_waitcnt lgkmcnt(0)")
    A(f"s_lshl_b32 s{S_T0}, s2, 9\ns_lshl_b32 s{S_T1}, s{S_WAVE}, 6\ns_add_u32 s{S_T0}, s{S_T0}, s{S_T1}\ns_add_u32 s{S_T0}, s{S_T0}, {WS_PROF}")
    A(f"v_mov_b32 v{vt1}, 0")
    for k in range(1, NST[0]):
        A(f"s_sub_u32 s{S_T1}, s{S_ST+2*k}, s{S_ST}")
        A(f"v_writelane_b32 v{vt1}, s{S_T1}, {k}")
    A(f"v_lshlrev_b32 v{vt0}, 2, v0")
    A(f"s_mov_b64 exec, 0xffff")
    A(f"buffer_store_dword v{vt1}, v{vt0}, s[{R_WS}:{R_WS+3}], s{S_T0} offen")
    A(f"s_mov_b64 exec, -1")

def lds_check(vdata, nwords, need_val, vaddr, off, vt, pre_spin=None):
    def red():
        t = []
        if nwords == 1: src = vdata
        elif nwords == 2: t.append(f"v_min_u32 v{vt}, v{vdata}, v{vdata+1}"); src = vt
        else:
            t.append(f"v_min3_u32 v{vt}, v{vdata}, v{vdata+1}, v{vdata+2}")
            t.append(f"v_min_u32 v{vt}, v{vt}, v{vdata+3}"); src = vt
        t.append("s_nop 0")
        t.append(f"v_readfirstlane_b32 s{S_T5}, v{src}")
        t.append("s_nop 0")
        t.append(f"s_cmp_ge_u32 s{S_T5}, {need_val}")
        return "\n".join(t)
    ls, lr, ll = A.lab("Lslow"), A.lab("Lret"), A.lab("Lspin")
    A(red())
    A(f"s_cbranch_scc0 {ls}\n{lr}:")
    rd = {1: "ds_read_b32", 2: "ds_read_b64", 4: "ds_read_b128"}[nwords]
    t = f"{ls}:\n"
    if pre_spin: t += pre_spin + "\n"
    t += f"s_mov_b32 s{S_BND}, {SPIN}\n{ll}:\n{rd} {vr(vdata, nwords)}, v{vaddr} offset:{off}\ns_waitcnt lgkmcnt(0)\n" + red()
    t += f"\ns_cbranch_scc1 {lr}\ns_sleep 1\ns_sub_u32 s{S_BND}, s{S_BND}, 1\ns_cmp_lg_u32 s{S_BND}, 0\ns_cbranch_scc1 {ll}\ns_branch {lr}"
    slow.append(t)

def lds_wait(vdata, nwords, need_val, vaddr, off, vt, pre_spin=None):
    rd = {1: "ds_read_b32", 2: "ds_read_b64", 4: "ds_read_b128"}[nwords]
    A(f"{rd} {vr(vdata, nwords)}, v{vaddr} offset:{off}\ns_waitcnt lgkmcnt(0)")
    lds_check(vdata, nwords, need_val, vaddr, off, vt, pre_spin)

def flush_slow():
    for t in slow: A(t)
    slow.clear()

def gpoll(loads, vt):
    ll, ld = A.lab("Lgp"), A.lab("Lgd")
    A(f"s_mov_b32 s{S_BND}, {SPIN}\n{ll}:")
    regs = []
    for (vd, n, voff, imm) in loads:
        mn = {1: "buffer_load_dword", 2: "buffer_load_dwordx2", 4: "buffer_load_dwordx4"}[n]
        A(f"{mn} {vr(vd, n)}, v{voff}, s[{R_WS}:{R_WS+3}], 0 offen offset:{imm} sc1")
        regs += list(range(vd, vd + n))
    A("s_waitcnt vmcnt(0)")
    A(f"v_xor_b32 v{vt}, s{S_TAG}, v{regs[0]}")
    for r in regs[1:]:
        A(f"v_xor_b32 v{r}, s{S_TAG}, v{r}\nv_or_b32 v{vt}, v{vt}, v{r}")
    A(f"v_cmp_ne_u32 vcc, 0, v{vt}\ns_nop 1\ns_cbranch_vccz {ld}")
    A(f"s_sleep 2\ns_sub_u32 s{S_BND}, s{S_BND}, 1\ns_cmp_lg_u32 s{S_BND}, 0\ns_cbranch_scc1 {ll}\n{ld}:")

def flag_store(vt0, vt1, soff_reg):
    A(f"v_mov_b32 v{vt0}, s{S_TAG}\nv_mov_b32 v{vt1}, 0\ns_mov_b64 exec, 1")
    A(f"buffer_store_dword v{vt0}, v{vt1}, s[{R_WS}:{R_WS+3}], s{soff_reg} offen sc1")
    A(f"s_mov_b64 exec, -1")

def make_tag():
    A(f"s_mul_i32 s{S_TAG}, s{S_EPO}, 1664525\ns_add_u32 s{S_TAG}, s{S_TAG}, 1013904223")

A(f"{NAME}_kernel:")
A("s_cmp_ge_u32 s2, 256\ns_cbranch_scc1 L_exit")
if PROF: A(f"s_memtime s[{S_ST}:{S_ST+1}]")
A("s_load_dwordx16 s[16:31], s[0:1], 0\ns_load_dwordx16 s[32:47], s[0:1], 64")
A("v_lshrrev_b32 v1, 6, v0\nv_and_b32 v0, 63, v0")
A(f"v_readfirstlane_b32 s{S_WAVE}, v1")
A(f"v_lshlrev_b32 v2, 2, v0\nv_and_b32 v2, 63, v2\nv_add_u32 v2, {FLAGS}, v2\nv_mov_b32 v3, 0\nds_write_b32 v2, v3")
A(f"s_and_b32 s{S_XCD}, s2, 7\ns_lshr_b32 s{S_LOC}, s2, 3")
A(f"s_and_b32 s{S_T0}, s{S_LOC}, 3\ns_lshr_b32 s{S_C}, s{S_LOC}, 2")
A(f"s_lshr_b32 s{S_T1}, s{S_XCD}, 1\ns_lshl_b32 s{S_T1}, s{S_T1}, 2\ns_add_u32 s{S_MT}, s{S_T1}, s{S_T0}")
A(f"s_and_b32 s{S_T1}, s{S_XCD}, 1\ns_mul_i32 s{S_T1}, s{S_T1}, 7\ns_add_u32 s{S_FC}, s{S_T1}, s{S_C}")
A(f"s_lshl_b32 s{S_T}, s{S_XCD}, 2\ns_add_u32 s{S_T}, s{S_T}, s{S_T0}")
A(f"s_lshl_b32 s{S_J}, s{S_XCD}, 5\ns_add_u32 s{S_J}, s{S_J}, s{S_LOC}")
A(f"s_lshl_b32 s{S_T0}, s{S_T0}, 1\ns_add_u32 s{S_T0}, s{S_T0}, s{S_C}\ns_and_b32 s{S_ROT1}, s{S_T0}, 7")
A(f"s_cmp_ge_u32 s{S_T0}, 7\ns_cselect_b32 s{S_T1}, 7, 0\ns_sub_u32 s{S_ROT2}, s{S_T0}, s{S_T1}")
A(f"s_cmp_lt_u32 s{S_LOC}, 28\ns_cselect_b32 s{S_HAS1}, 1, 0")
A("s_waitcnt lgkmcnt(0)\ns_barrier")
srd(R_WS, P_WS, WS_SIZE)
A(f"s_cmp_lt_u32 s{S_WAVE}, 4\ns_cbranch_scc1 L_G")
A(f"s_cmp_ge_u32 s{S_WAVE}, 6\ns_cbranch_scc1 L_K")

def loader():
    stamp_reset()
    V_OA, V_OB, V_O2, V_FA, V_FD, V_T, V_RA, V_RV = 1, 2, 3, 4, 8, 12, 13, 14
    S_X = S_T4
    S_BASE, S_STEP, S_KSTEP, S_SO, S_M, S_W2B = 18, 19, 20, 21, 22, 23
    A(f"s_sub_u32 s{S_X}, s{S_WAVE}, 4")
    A("v_lshrrev_b32 v5, 3, v0\nv_and_b32 v6, 7, v0")
    A("v_lshrrev_b32 v7, 1, v5\nv_xor_b32 v7, v6, v7\nv_lshlrev_b32 v7, 4, v7\nv_lshl_add_u32 v7, v5, 10, v7")
    A("v_xor_b32 v8, 64, v7")
    A("v_lshrrev_b32 v9, 4, v0\nv_bfe_u32 v10, v0, 2, 2\nv_xor_b32 v10, v10, v9\nv_lshlrev_b32 v10, 6, v10\nv_and_b32 v11, 3, v0\nv_lshl_add_u32 v10, v11, 4, v10")
    A("v_mul_u32_u24 v9, 3584, v9\nv_add_u32 v9, v9, v10")
    A(f"s_cmp_eq_u32 s{S_X}, 0\ns_cselect_b64 vcc, -1, 0")
    A(f"v_cndmask_b32 v{V_OA}, v9, v7, vcc\nv_cndmask_b32 v{V_OB}, v9, v8, vcc")
    A(f"v_bfe_u32 v10, v0, 4, 1\nv_lshlrev_b32 v10, 2, v10\nv_xor_b32 v10, v6, v10\nv_lshlrev_b32 v10, 4, v10\nv_lshl_add_u32 v{V_O2}, v5, 10, v10")
    A(f"v_mov_b32 v{V_FA}, {FLAGS}")
    A(f"s_lshl_b32 s{S_T0}, s{S_X}, 2\ns_add_u32 s{S_T0}, s{S_T0}, {F_RDY}\nv_mov_b32 v{V_RA}, s{S_T0}")
    A(f"s_cmp_eq_u32 s{S_X}, 0")
    A(f"s_cselect_b32 s{R_A}, s{P_U}, s{P_W1}\ns_cselect_b32 s{R_A+1}, s{P_U+1}, s{P_W1+1}")
    A(f"s_mov_b32 s{R_A+2}, {512*3584}\ns_cmov_b32 s{R_A+2}, 0x200000\ns_mov_b32 s{R_A+3}, 0x20000")
    A(f"s_mov_b32 s{S_STEP}, {4*3584}\ns_cmov_b32 s{S_STEP}, 8192\ns_mov_b32 s{S_KSTEP}, {64*3584}\ns_cmov_b32 s{S_KSTEP}, 128")
    A(f"s_lshl_b32 s{S_T0}, s{S_MT}, 17\ns_lshl_b32 s{S_T1}, s{S_FC}, 8")
    A(f"s_cmp_eq_u32 s{S_X}, 0\ns_cselect_b32 s{S_BASE}, s{S_T0}, s{S_T1}")
    srd(R_B, P_W2, 1792 * 1024)
    A(f"s_mul_i32 s{S_W2B}, s{S_X}, {896*1024}\ns_lshl_b32 s{S_T0}, s{S_C}, 7\ns_add_u32 s{S_W2B}, s{S_W2B}, s{S_T0}")
    A(f"s_lshl_b32 s{S_M}, s{S_X}, 14")
    A(f"s_cmp_eq_u32 s{S_HAS1}, 0\ns_cbranch_scc1 L_ld_w2")
    vm = Cnt(A, "vmcnt", 63)
    def publish(n):
        A(f"v_mov_b32 v{V_RV}, {n}\nds_max_u32 v{V_RA}, v{V_RV}")
    for st in range(15):
        if st == 8:
            A("L_ld_w2:")
        if st >= 3:
            pre = f"s_waitcnt vmcnt(0)\nv_mov_b32 v{V_RV}, {st}\nds_max_u32 v{V_RA}, v{V_RV}"
            lds_wait(V_FD, 4, st - 2, V_FA, 16, V_T, pre_spin=pre)
        slot = (st & 3) * SLOT
        if st < 8:
            A(f"s_add_u32 s{S_T0}, s{S_ROT1}, {st}\ns_and_b32 s{S_T0}, s{S_T0}, 7\ns_mul_i32 s{S_T0}, s{S_T0}, s{S_KSTEP}\ns_add_u32 s{S_SO}, s{S_T0}, s{S_BASE}")
        else:
            j = st - 8
            A(f"s_add_u32 s{S_T0}, s{S_ROT2}, {j}\ns_cmp_ge_u32 s{S_T0}, 7\ns_cselect_b32 s{S_T1}, 7, 0\ns_sub_u32 s{S_T0}, s{S_T0}, s{S_T1}")
            A(f"s_lshl_b32 s{S_T0}, s{S_T0}, 16\ns_add_u32 s{S_SO}, s{S_T0}, s{S_W2B}")
        for i in range(16):
            A(f"s_add_u32 m0, s{S_M}, {slot + i*1024}")
            if i > 0:
                if st < 8: A(f"s_add_u32 s{S_SO}, s{S_SO}, s{S_STEP}")
                else: A(f"s_add_u32 s{S_SO}, s{S_SO}, {8192 if i != 8 else 448*1024 - 7*8192}")
            if st < 8:
                A(f"buffer_load_dwordx4 v{V_OA if i % 2 == 0 else V_OB}, s[{R_A}:{R_A+3}], s{S_SO} offen lds")
            else:
                A(f"buffer_load_dwordx4 v{V_O2}, s[{R_B}:{R_B+3}], s{S_SO} offen lds")
            vm.issue(st)
            if i == 7 and st >= 2:
                vm.wait(st - 2); publish(st - 1)
        if st in (0, 3, 7, 11, 14): stamp()
    vm.wait(13); publish(14)
    vm.wait(14); publish(15)
    stamp()
    stamp_flush(1, 2)
    A("s_waitcnt lgkmcnt(0)")
    A("s_endpgm")
    flush_slow()
loader()

LA = [0,1,2,3,4,5,6,7, 256,258,260,262, 512,516,768,772, 1024,1280,1536,1792, 2048]
def kwave():
    stamp_reset()
    A("L_K:")
    S_CH, S_D = 15, 71
    A(f"s_load_dword s{S_EPO}, s[{P_WS}:{P_WS+1}], {WS_EPOCH}")
    A(f"s_and_b32 s{S_CH}, s{S_WAVE}, 1\ns_lshl_b32 s{S_D}, s{S_J}, 1\ns_add_u32 s{S_D}, s{S_D}, s{S_CH}")
    RAW = 2
    A(f"s_lshl_b32 s{S_T0}, s{S_D}, 8\nv_lshl_add_u32 v1, v0, 2, s{S_T0}")
    for i, p in enumerate((P_ARE, P_AIM, P_BRE, P_BIM, P_CRE, P_CIM)):
        A(f"global_load_dword v{RAW+i}, v1, s[{p}:{p+1}]")
    A(f"s_lshl_b32 s{S_T0}, s{S_D}, 1\nv_mov_b32 v9, s{S_T0}\nglobal_load_ushort v8, v9, s[{P_LDT}:{P_LDT+1}]")
    A(f"s_getpc_b64 s[{S_T2}:{S_T2+1}]\nL_pc:")
    A(f"s_sub_u32 s{S_T2}, s{S_T2}, L_pc-{NAME}_kernel\ns_subb_u32 s{S_T3}, s{S_T3}, 0")
    A(f"s_lshl_b32 s{S_T0}, s{S_LOC}, 1\ns_add_u32 s{S_T0}, s{S_T0}, s{S_CH}\ns_lshl_b32 s{S_T0}, s{S_T0}, 10")
    A(f"v_lshl_add_u32 v10, v0, 4, s{S_T0}\nv_min_u32 v10, L_exit-{NAME}_kernel-16, v10")
    A(f"global_load_dwordx4 v[12:15], v10, s[{S_T2}:{S_T2+1}]")
    S_KB, S_KCB = 75, P_BX
    A(f"s_mul_i32 s{S_KB}, s{S_CH}, {KCH}\ns_add_u32 s{S_KB}, s{S_KB}, {KCOP}")
    A(f"s_mul_i32 s{S_KCB}, s{S_CH}, {KCCH}\ns_add_u32 s{S_KCB}, s{S_KCB}, {KC}")
    GI = 200
    A(f"v_lshlrev_b32 v16, 3, v0\nv_sub_u32 v16, 2047, v16")
    A(f"s_sub_u32 s{S_T1}, s{S_KCB}, {2*17024}")
    for it in range(4):
        for e in range(9):
            g = GI + it * 9 + e
            A(f"v_subrev_u32 v17, {512*it + e}, v16")
            A(f"v_cvt_f32_i32 v18, v17\nv_cvt_pk_bf16_f32 v18, v18, v18\nv_and_b32 v18, 0xffff, v18")
            if it < 3:
                A(f"v_lshl_add_u32 v{g}, v18, 1, s{S_T1}")
            else:
                A(f"v_subrev_u32 v18, 17024, v18\nv_min_i32 v17, 127, v17\nv_max_i32 v18, v18, v17\nv_lshl_add_u32 v{g}, v18, 1, s{S_KCB}")
    A(f"s_add_u32 s{S_T1}, s{S_KCB}, {2*700}\nv_writelane_b32 v{GI+35}, s{S_T1}, 63")
    A(f"v_mov_b32 v20, 0\nv_mov_b32 v21, 0\nv_mov_b32 v22, 0\nv_mov_b32 v23, 0")
    A(f"v_mov_b32 v17, s{S_T1}\nds_write_b32 v17, v20")
    A(f"s_mul_i32 s{S_T0}, s{S_CH}, {UCH}\ns_add_u32 s{S_T0}, s{S_T0}, {UBUF}")
    A(f"v_min_u32 v17, 59, v0\nv_lshl_add_u32 v17, v17, 3, s{S_T0}\nds_write_b64 v17, v[20:21]")
    V_CB, V_CS = 236, 237
    base = []; strd = []
    for a in range(32):
        if a < 8: base.append(a); strd.append(8)
        elif a < 12: base.append(256 + a - 8); strd.append(4)
        elif a < 14: base.append(384 + a - 12); strd.append(2)
        elif a < 16: base.append(448 + a - 14); strd.append(2)
        elif a < 21: base.append(512 + 32 * (a - 16)); strd.append(1)
        else: base.append(672 + (a - 21)); strd.append(0)
    A(f"v_and_b32 v17, 31, v0\nv_add_u32 v{V_CB}, 651, v17\nv_mov_b32 v{V_CS}, 0")
    for lim, bexpr, st in ((21, "v_lshlrev_b32 v18, 5, v17", 1), (16, "v_add_u32 v18, 434, v17", 2), (14, "v_add_u32 v18, 372, v17", 2),
                           (12, "v_add_u32 v18, 248, v17", 4), (8, "v_mov_b32 v18, v17", 8)):
        A(f"{bexpr}\nv_mov_b32 v19, {st}\nv_cmp_gt_u32 vcc, {lim}, v17")
        A(f"v_cndmask_b32 v{V_CB}, v{V_CB}, v18, vcc\nv_cndmask_b32 v{V_CS}, v{V_CS}, v19, vcc")
    A(f"v_lshrrev_b32 v18, 5, v0\nv_lshlrev_b32 v18, 2, v18\nv_mad_u32_u24 v{V_CB}, v18, v{V_CS}, v{V_CB}")
    A(f"v_lshl_add_u32 v{V_CB}, v{V_CB}, 1, s{S_KCB}\nv_lshlrev_b32 v{V_CS}, 1, v{V_CS}")
    V_TW, V_TR = 238, 239
    A(f"v_lshl_add_u32 v{V_TW}, v0, 2, s{S_KB}")
    A(f"v_mul_u32_u24 v17, {TRS}, v17\nv_lshrrev_b32 v18, 5, v0\nv_lshl_add_u32 v17, v18, 4, v17\nv_add_u32 v{V_TR}, s{S_KB}, v17")
    stamp()
    A("s_waitcnt vmcnt(1) lgkmcnt(0)")
    stamp()
    make_tag()
    V_DT = 9
    A(f"v_lshlrev_b32 v8, 16, v8\nv_mul_f32 v8, 0x3fb8aa3b, v8\nv_exp_f32 v8, v8\nv_cvt_pk_bf16_f32 v8, v8, v8\nv_lshlrev_b32 v{V_DT}, 16, v8")
    ACC = 24
    FB, FA = 40, 72
    E1, E8, E64, F1, CC = 104, 106, 108, 110, 112
    W = 114
    TMP = 196
    def cmul(d, a, b):
        A(f"v_pk_mul_f32 v[{TMP}:{TMP+1}], v[{a}:{a+1}], v[{b}:{b+1}] op_sel:[0,0] op_sel_hi:[0,1]")
        A(f"v_pk_fma_f32 v[{d}:{d+1}], v[{a}:{a+1}], v[{b}:{b+1}], v[{TMP}:{TMP+1}] op_sel:[1,1,0] op_sel_hi:[1,0,1] neg_lo:[1,0,0]")
    pk = [240, 241, 242, 243]; pki = [0]
    def put(row, p, neg):
        t = pk[pki[0] % 4]; pki[0] += 1
        A(f"v_cvt_pk_bf16_f32 v{t}, v{p}, {'-' if neg else ''}v{p+1}\nds_write_b32 v{V_TW}, v{t} offset:{row*TRS}")
    for hn in range(2):
        u = [16, 17, 18, 19, 20, 21]
        for i in range(6):
            if hn == 0: A(f"v_lshlrev_b32 v{u[i]}, 16, v{RAW+i}")
            else: A(f"v_and_b32 v{u[i]}, 0xffff0000, v{RAW+i}")
        A(f"v_mul_f32 v16, v{V_DT}, v16\nv_mul_f32 v17, v{V_DT}, v17")
        A(f"v_mul_f32 v16, 0x3fb8aa3b, v16\nv_mul_f32 v17, 0.15915494, v17")
        for (dst, m) in ((E8, 8.0), (E64, 64.0), (E1, 1.0), (F1, 256.0)):
            import struct
            lit = "0x%08x" % struct.unpack("<I", struct.pack("<f", m))[0]
            A(f"v_mul_f32 v22, {lit}, v16\nv_mul_f32 v23, {lit}, v17\nv_exp_f32 v22, v22\nv_fract_f32 v23, v23")
            A(f"v_cos_f32 v{dst}, v23\nv_sin_f32 v{dst+1}, v23")
            A(f"v_mul_f32 v{dst}, v{dst}, v22\nv_mul_f32 v{dst+1}, v{dst+1}, v22")
        cmul(CC, 18, 20)
        A(f"v_mul_f32 v{CC}, v{V_DT}, v{CC}\nv_mul_f32 v{CC+1}, v{V_DT}, v{CC+1}")
        P = [W + 2 * i for i in range(8)]
        G2, G3, Q0, Q1 = W + 16, W + 18, W + 20, W + 22
        A(f"v_mov_b32 v{P[0]}, 1.0\nv_mov_b32 v{P[0]+1}, 0\nv_mov_b32 v{P[1]}, v{E8}\nv_mov_b32 v{P[1]+1}, v{E8+1}")
        cmul(P[2], P[1], P[1]); cmul(G2, E64, E64)
        cmul(P[3], P[2], P[1]); cmul(P[4], P[2], P[2]); cmul(G3, G2, E64)
        cmul(P[5], P[4], P[1]); cmul(P[6], P[4], P[2]); cmul(P[7], P[4], P[3])
        if hn == 1: A("s_waitcnt lgkmcnt(0)")
        for j in range(8): put(j, P[j], False)
        for m, g in ((1, E64), (2, G2), (3, G3)):
            put(8 * m, g, False)
            for j in range(1, 8):
                q = Q0 if j % 2 else Q1
                cmul(q, P[j], g); put(8 * m + j, q, False)
        for k in range(8):
            A(f"ds_read_b128 {vr(FB+4*k,4)}, v{V_TR} offset:{32*k}")
        a = P
        F2, F3, F4 = G2, G3, W + 24
        E2 = W + 26
        A(f"v_mov_b32 v{a[0]}, v{CC}\nv_mov_b32 v{a[0]+1}, v{CC+1}")
        cmul(E2, E1, E1); cmul(a[1], CC, E1); cmul(F2, F1, F1)
        cmul(a[2], CC, E2); cmul(a[3], a[1], E2); cmul(F3, F2, F1); cmul(F4, F2, F2)
        cmul(a[4], a[2], E2); cmul(a[5], a[3], E2); cmul(a[6], a[4], E2); cmul(a[7], a[5], E2)
        A("s_waitcnt lgkmcnt(0)")
        for i in range(8): put(i, a[i], True)
        row = 8
        for (f, src) in ((F1, 0), (F1, 2), (F1, 4), (F1, 6), (F2, 0), (F2, 4), (F3, 0), (F3, 4)):
            q = Q0 if row % 2 else Q1
            cmul(q, a[src], f); put(row, q, True); row += 1
        R4 = W + 28
        cmul(R4, CC, F4); put(16, R4, True)
        for i, f in enumerate((F1, F2, F3, F4)):
            q = Q0 if i % 2 else Q1
            cmul(q, R4, f); put(17 + i, q, True)
        for k in range(8):
            A(f"ds_read_b128 {vr(FA+4*k,4)}, v{V_TR} offset:{32*k}")
        for k in range(8):
            A(f"s_waitcnt lgkmcnt({7-k})")
            c = "0" if (hn == 0 and k == 0) else vr(ACC, 16)
            A(f"v_mfma_f32_32x32x16_bf16 {vr(ACC,16)}, {vr(FB+4*k,4)}, {vr(FA+4*k,4)}, {c}")
    stamp()
    for i in range(16):
        j0 = 8 * (i >> 2) + (i & 3)
        A(f"v_mad_u32_u24 v{40+i}, v{V_CS}, {j0}, v{V_CB}")
    for i in range(0, 16, 2):
        A(f"v_cvt_pk_bf16_f32 v{60+i//2}, v{ACC+i}, v{ACC+i+1}")
        A(f"ds_write_b16 v{40+i}, v{60+i//2}\nds_write_b16_d16_hi v{41+i}, v{60+i//2}")
    A("s_waitcnt lgkmcnt(0)")
    GV = 72
    A(f"v_lshl_add_u32 v16, v0, 4, s{S_KB}")
    for it in range(4):
        for e in range(9):
            A(f"ds_read_u16 v{GV+it*9+e}, v{GI+it*9+e}")
    A(f"v_mov_b32 v20, 0\nv_mov_b32 v21, 0\nv_mov_b32 v22, 0\nv_mov_b32 v23, 0")
    A("s_waitcnt lgkmcnt(0)")
    for it in range(4):
        g = GV + it * 9
        o = 112 + it * 8
        for q in range(4):
            A(f"v_lshl_or_b32 v{o+q}, v{g+2*q+1}, 16, v{g+2*q}")
            A(f"v_lshl_or_b32 v{o+4+q}, v{g+2*q+2}, 16, v{g+2*q+1}")
        A(f"ds_write_b128 v16, {vr(o,4)} offset:{it*1024}\nds_write_b128 v16, {vr(o+4,4)} offset:{KC1+it*1024}")
    A(f"v_and_b32 v17, 1, v0\nv_lshl_add_u32 v17, v17, 4, s{S_KB}")
    A(f"ds_write_b128 v17, v[20:23] offset:4096\nds_write_b128 v17, v[20:23] offset:{KC1+4096}")
    stamp()
    A(f"s_lshr_b32 s{S_T0}, s{S_J}, 5\ns_lshl_b32 s{S_T1}, s{S_T0}, 9\ns_lshl_b32 s{S_T2}, s{S_CH}, 8\ns_add_u32 s{S_T1}, s{S_T1}, s{S_T2}\ns_add_u32 s{S_T1}, s{S_T1}, {WS_UFLAG}")
    A(f"v_lshl_add_u32 v18, v0, 2, s{S_T1}")
    gpoll([(19, 1, 18, 0)], 20)
    stamp()
    A(f"s_lshl_b32 s{S_T0}, s{S_T0}, 18\ns_lshl_b32 s{S_T2}, s{S_CH}, 17\ns_add_u32 s{S_T0}, s{S_T0}, s{S_T2}")
    A(f"s_and_b32 s{S_T2}, s{S_J}, 31\ns_lshl_b32 s{S_T2}, s{S_T2}, 6\ns_add_u32 s{S_T0}, s{S_T0}, s{S_T2}\ns_add_u32 s{S_T0}, s{S_T0}, {WS_UT}")
    A(f"v_lshrrev_b32 v18, 2, v0\nv_lshlrev_b32 v19, 11, v18\nv_and_b32 v20, 3, v0\nv_lshl_add_u32 v19, v20, 4, v19")
    for i in range(4):
        A(f"buffer_load_dwordx4 {vr(24+4*i,4)}, v19, s[{R_WS}:{R_WS+3}], s{S_T0} offen sc1")
        if i < 3: A(f"s_add_u32 s{S_T0}, s{S_T0}, {16*2048}")
    A(f"v_bfe_u32 v20, v0, 1, 1\nv_mul_u32_u24 v20, {UCH}, v20\nv_lshl_add_u32 v20, v18, 5, v20\nv_and_b32 v21, 1, v0\nv_lshl_add_u32 v20, v21, 4, v20")
    A(f"s_lshl_b32 s{S_T2}, s{S_CH}, 11\ns_add_u32 s{S_T2}, s{S_T2}, {UBUF+480}\nv_add_u32 v20, s{S_T2}, v20")
    for i in range(4):
        A(f"s_waitcnt vmcnt({3-i})\nds_write_b128 v20, {vr(24+4*i,4)} offset:{512*i}")
    A("s_waitcnt lgkmcnt(0)")
    A(f"s_lshl_b32 s{S_T0}, s{S_CH}, 2\ns_add_u32 s{S_T0}, s{S_T0}, {F_CRDY}\nv_mov_b32 v16, s{S_T0}\nv_mov_b32 v17, 1\nds_write_b32 v16, v17")
    stamp()
    A(f"v_bfe_u32 v18, v0, 2, 3\nv_lshlrev_b32 v18, 9, v18\nv_and_b32 v19, 3, v0\nv_lshl_add_u32 v18, v19, 2, v18")
    A(f"s_lshl_b32 s{S_T0}, s{S_T}, 4\ns_add_u32 s{S_T0}, s{S_T0}, {WS_UFLAG}\nv_add_u32 v18, s{S_T0}, v18")
    gpoll([(19, 1, 18, 0)], 20)
    A(f"s_lshl_b32 s{S_T0}, s{S_T}, 11\ns_add_u32 s{S_T0}, s{S_T0}, {WS_GP}\nv_lshlrev_b32 v18, 2, v0")
    for c in range(8):
        A(f"buffer_load_dword v{24+c}, v18, s[{R_WS}:{R_WS+3}], s{S_T0} offen offset:{256*c} sc1")
    A("s_waitcnt vmcnt(0)")
    A("v_add_f32 v24, v24, v25\nv_add_f32 v26, v26, v27\nv_add_f32 v28, v28, v29\nv_add_f32 v30, v30, v31")
    A("v_add_f32 v24, v24, v26\nv_add_f32 v28, v28, v30\nv_add_f32 v24, v24, v28")
    V_G = 10
    A("v_cvt_pk_bf16_f32 v24, v24, v24\nv_lshlrev_b32 v24, 16, v24")
    A("v_mul_f32 v24, 0xbfb8aa3b, v24\nv_exp_f32 v24, v24\nv_add_f32 v24, 1.0, v24\nv_rcp_f32 v24, v24")
    A(f"v_cvt_pk_bf16_f32 v24, v24, v24\nv_lshlrev_b32 v{V_G}, 16, v24")
    A(f"v_sub_f32 v25, 1.0, v{V_G}\nv_cvt_pk_bf16_f32 v25, v25, v25\nv_lshlrev_b32 v25, 16, v25")
    A(f"v_add_u32 v18, {OMG}, v18\nds_write_b32 v18, v25")
    A(f"s_cmp_ge_u32 s{S_T}, 24\ns_cselect_b32 s{S_T0}, 2048, 0\ns_lshl_b32 s{S_T1}, s{S_C}, 8\ns_add_u32 s{S_T0}, s{S_T0}, s{S_T1}")
    A(f"s_lshl_b32 s{S_T1}, s{S_CH}, 7\ns_add_u32 s{S_T0}, s{S_T0}, s{S_T1}\ns_add_u32 s{S_T0}, s{S_T0}, {WS_AFLAG}")
    A(f"v_and_b32 v18, 31, v0\nv_lshl_add_u32 v18, v18, 2, s{S_T0}")
    A(f"v_mov_b32 v16, {FLAGS}")
    lds_wait(20, 4, 1, 16, 48, 17)
    gpoll([(19, 1, 18, 0)], 20)
    stamp()
    A(f"s_lshl_b32 s{S_T0}, s{S_C}, 18\ns_lshl_b32 s{S_T1}, s{S_CH}, 17\ns_add_u32 s{S_T0}, s{S_T0}, s{S_T1}\ns_lshl_b32 s{S_T1}, s{S_T}, 7\ns_add_u32 s{S_T0}, s{S_T0}, s{S_T1}\ns_add_u32 s{S_T0}, s{S_T0}, {WS_AT}")
    A(f"v_lshrrev_b32 v18, 3, v0\nv_lshlrev_b32 v18, 12, v18\nv_and_b32 v19, 7, v0\nv_lshl_add_u32 v18, v19, 4, v18")
    for i in range(4):
        A(f"buffer_load_dwordx4 {vr(24+4*i,4)}, v18, s[{R_WS}:{R_WS+3}], s{S_T0} offen sc1")
        if i < 3: A(f"s_add_u32 s{S_T0}, s{S_T0}, {8*4096}")
    A(f"v_lshl_add_u32 v16, v0, 4, s{S_KB}")
    A(f"v_bfe_u32 v17, v0, 2, 2\nv_lshlrev_b32 v17, 7, v17\nv_lshrrev_b32 v18, 4, v0\nv_lshl_add_u32 v17, v18, 5, v17\nv_and_b32 v18, 3, v0\nv_lshl_add_u32 v17, v18, 3, v17\nv_add_u32 v17, s{S_KB}, v17")
    for i in range(4):
        A(f"s_waitcnt vmcnt({3-i})\nds_write_b128 v16, {vr(24+4*i,4)} offset:{1024*i}")
    A("s_waitcnt lgkmcnt(0)")
    for q in range(8):
        A(f"ds_read_b64_tr_b16 {vr(40+2*q,2)}, v17 offset:{512*q}")
    A(f"v_and_b32 v18, 7, v0\ns_lshl_b32 s{S_T0}, s{S_CH}, 2\nv_xor_b32 v18, s{S_T0}, v18\nv_lshlrev_b32 v18, 4, v18\nv_lshl_add_u32 v18, v0, 7, v18\nv_add_u32 v18, {PA}, v18")
    A("s_waitcnt lgkmcnt(0)")
    for d in range(16):
        A(f"v_lshlrev_b32 v20, 16, v{40+d}\nv_and_b32 v21, 0xffff0000, v{40+d}\nv_mul_f32 v20, v{V_G}, v20\nv_mul_f32 v21, v{V_G}, v21\nv_cvt_pk_bf16_f32 v{60+d}, v20, v21")
    for p in range(4):
        A(f"v_xor_b32 v19, {16*p}, v18\nds_write_b128 v19, {vr(60+4*p,4)}")
    A(f"s_cmp_lg_u32 s2, 0\ns_cbranch_scc1 L_K_end\ns_cmp_lg_u32 s{S_WAVE}, 7\ns_cbranch_scc1 L_K_end")
    A(f"v_lshlrev_b32 v18, 4, v0\nv_add_u32 v18, {WS_AFLAG}, v18")
    gpoll([(24 + 4 * i, 4, 18, 1024 * i) for i in range(4)], 20)
    A(f"s_mov_b32 s{S_T0}, {WS_EPOCH}")
    flag_store(20, 21, S_T0)
    A("L_K_end:")
    stamp()
    stamp_flush(1, 2)
    A("s_waitcnt lgkmcnt(0)")
    A("s_endpgm")
    flush_slow()
kwave()

def gwave():
    stamp_reset()
    A("L_G:")
    A(f"s_load_dword s{S_EPO}, s[{P_WS}:{P_WS+1}], {WS_EPOCH}")
    srd(R_A, P_U, 0x200000)
    srd(R_OUT, P_OUT, 0x200000)
    V_FL, V_FRE = 1, 2
    A(f"s_lshl_b32 s{S_T0}, s{S_T}, 16\ns_lshl_b32 s{S_T1}, s{S_WAVE}, 14\ns_add_u32 s{S_T0}, s{S_T0}, s{S_T1}\ns_lshl_b32 s{S_T1}, s{S_C}, 7\ns_add_u32 s{S_T0}, s{S_T0}, s{S_T1}")
    A("v_lshrrev_b32 v3, 3, v0\nv_and_b32 v4, 7, v0\nv_lshlrev_b32 v5, 4, v4\nv_lshl_add_u32 v6, v3, 10, v5")
    A(f"buffer_load_dwordx4 v[16:19], v6, s[{R_A}:{R_A+3}], s{S_T0} offen")
    A(f"s_add_u32 s{S_T0}, s{S_T0}, 8192")
    A(f"buffer_load_dwordx4 v[20:23], v6, s[{R_A}:{R_A+3}], s{S_T0} offen")
    A(f"v_add_u32 v7, s{S_T1}, v5\nglobal_load_dwordx4 v[24:27], v7, s[{P_GW}:{P_GW+1}]")
    V_DSK = 15
    A(f"s_lshr_b32 s{S_T2}, s{S_WAVE}, 1\ns_lshl_b32 s{S_T3}, s{S_J}, 1\ns_add_u32 s{S_T2}, s{S_T2}, s{S_T3}\ns_lshl_b32 s{S_T2}, s{S_T2}, 1\nv_mov_b32 v8, s{S_T2}")
    A(f"global_load_ushort v{V_DSK}, v8, s[{P_DSK}:{P_DSK+1}]")
    A(f"v_mov_b32 v{V_FL}, {FLAGS}\ns_lshl_b32 s{S_T2}, s{S_WAVE}, 2\ns_add_u32 s{S_T2}, s{S_T2}, {F_FREE}\nv_mov_b32 v{V_FRE}, s{S_T2}")
    S_WB = 15
    A(f"s_lshl_b32 s{S_WB}, s{S_WAVE}, 13")
    VX, VW = 128, 136
    A(f"s_and_b32 s{S_T2}, s{S_WAVE}, 1\ns_lshl_b32 s{S_T2}, s{S_T2}, 13")
    A(f"v_and_b32 v8, 31, v0\nv_lshrrev_b32 v9, 5, v0\nv_bfe_u32 v10, v0, 1, 3\nv_xor_b32 v10, v10, v9\nv_lshlrev_b32 v10, 4, v10\nv_lshl_add_u32 v10, v8, 7, v10\nv_add_u32 v{VX}, s{S_T2}, v10")
    for ks in range(1, 4): A(f"v_xor_b32 v{VX+ks}, {32*ks}, v{VX}")
    for ks in range(4): A(f"v_add_u32 v{VX+4+ks}, 0x10000, v{VX+ks}")
    A(f"v_bfe_u32 v10, v0, 2, 2\nv_lshl_add_u32 v11, v9, 3, v10\nv_lshlrev_b32 v11, 8, v11\nv_bfe_u32 v12, v0, 4, 1\nv_lshl_add_u32 v11, v12, 5, v11\nv_and_b32 v12, 3, v0\nv_lshl_add_u32 v11, v12, 3, v11")
    A(f"s_and_b32 s{S_T2}, s{S_WAVE}, 2\nv_xor_b32 v12, s{S_T2}, v10\nv_lshl_add_u32 v12, v12, 6, v11\nv_add_u32 v{VW}, 16384, v12\nv_xor_b32 v{VW+1}, 64, v{VW}")
    A(f"v_add_u32 v{VW+2}, 0x10000, v{VW}\nv_add_u32 v{VW+3}, 0x10000, v{VW+1}")
    VW2 = 140
    A(f"v_lshl_add_u32 v11, v9, 2, v10\nv_lshlrev_b32 v11, 7, v11\nv_bfe_u32 v12, v0, 4, 1\nv_lshl_add_u32 v11, v12, 5, v11\nv_and_b32 v12, 3, v0\nv_lshl_add_u32 v11, v12, 3, v11")
    A(f"v_lshrrev_b32 v12, 1, v10\nv_lshl_add_u32 v11, v12, 6, v11\nv_add_u32 v{VW2}, s{S_WB}, v11\nv_xor_b32 v{VW2+1}, 64, v{VW2}")
    A(f"v_add_u32 v{VW2+2}, 0x10000, v{VW2}\nv_add_u32 v{VW2+3}, 0x10000, v{VW2+1}")
    A(f"s_add_u32 s{S_T2}, s{S_WB}, {3*SLOT}\nv_lshl_add_u32 v11, v0, 4, s{S_T2}")
    A(f"v_lshl_add_u32 v12, v9, 3, v10\nv_lshlrev_b32 v12, 7, v12\nv_bfe_u32 v13, v0, 4, 1\nv_lshl_add_u32 v12, v13, 5, v12\nv_and_b32 v13, 3, v0\nv_lshl_add_u32 v12, v13, 3, v12\nv_add_u32 v12, s{S_T2}, v12")
    A(f"v_lshlrev_b32 v13, 5, v8\nv_lshl_add_u32 v13, v9, 4, v13")
    A(f"s_lshl_b32 s{S_T0}, s{S_C}, 7\ns_lshl_b32 s{S_T1}, s{S_T}, 2\ns_add_u32 s{S_T0}, s{S_T0}, s{S_T1}\ns_add_u32 s{S_T0}, s{S_T0}, s{S_WAVE}")
    S_UF = 71
    A(f"s_lshl_b32 s{S_UF}, s{S_T0}, 2\ns_add_u32 s{S_UF}, s{S_UF}, {WS_UFLAG}")
    A(f"s_lshl_b32 s{S_T0}, s{S_T0}, 11\ns_add_u32 s{S_T0}, s{S_T0}, {WS_UT}")
    stamp()
    A("s_waitcnt vmcnt(2) lgkmcnt(0)")
    stamp()
    make_tag()
    A("ds_write_b128 v11, v[16:19]\nds_write_b128 v11, v[20:23] offset:1024")
    for i2 in range(2):
        for e in range(2):
            A(f"ds_read_b64_tr_b16 {vr(28+4*i2+2*e,2)}, v12 offset:{512*e + 64*i2}")
    A("s_waitcnt lgkmcnt(0)")
    A(f"buffer_store_dwordx4 v[28:31], v13, s[{R_WS}:{R_WS+3}], s{S_T0} offen sc1")
    A(f"buffer_store_dwordx4 v[32:35], v13, s[{R_WS}:{R_WS+3}], s{S_T0} offen offset:1024 sc1")
    A(f"s_cmp_eq_u32 s{S_HAS1}, 0\ns_cselect_b32 s{S_T1}, 9, 1\nv_mov_b32 v36, s{S_T1}\nds_write_b32 v{V_FRE}, v36")
    A("s_waitcnt vmcnt(2)")
    for q in range(4):
        A(f"v_lshlrev_b32 v{40+2*q}, 16, v{24+q}\nv_and_b32 v{41+2*q}, 0xffff0000, v{24+q}")
    A(f"v_mov_b32 v48, 0\nv_mov_b32 v49, 0\nv_lshlrev_b32 v{V_DSK}, 16, v{V_DSK}")
    for i in range(2):
        for q in range(4):
            x = 16 + 4 * i + q
            A(f"v_lshlrev_b32 v50, 16, v{x}\nv_and_b32 v51, 0xffff0000, v{x}\nv_pk_mul_f32 v[50:51], v[50:51], v[{40+2*q}:{41+2*q}]\nv_cvt_pk_bf16_f32 v50, v50, v51")
            A(f"v_and_b32 v51, 0xffff0000, v50\nv_lshlrev_b32 v50, 16, v50\nv_add_f32 v{48+i}, v{48+i}, v50\nv_add_f32 v{48+i}, v{48+i}, v51")
    for mod in ("quad_perm:[1,0,3,2]", "quad_perm:[2,3,0,1]", "row_half_mirror"):
        for i in range(2):
            A(f"v_add_f32_dpp v{48+i}, v{48+i}, v{48+i} {mod} row_mask:0xf bank_mask:0xf")
    A(f"v_cmp_eq_u32 vcc, 0, v4\nv_cndmask_b32 v48, v49, v48, vcc")
    A(f"v_lshl_add_u32 v50, v4, 3, v3\nv_lshlrev_b32 v50, 2, v50")
    A(f"s_lshl_b32 s{S_T0}, s{S_T}, 3\ns_add_u32 s{S_T0}, s{S_T0}, s{S_C}\ns_lshl_b32 s{S_T0}, s{S_T0}, 8\ns_lshl_b32 s{S_T1}, s{S_WAVE}, 6\ns_add_u32 s{S_T0}, s{S_T0}, s{S_T1}\ns_add_u32 s{S_T0}, s{S_T0}, {WS_GP}")
    A(f"s_mov_b32 exec_lo, 0x03030303\ns_mov_b32 exec_hi, 0x03030303")
    A(f"buffer_store_dword v48, v50, s[{R_WS}:{R_WS+3}], s{S_T0} offen sc1")
    A("s_mov_b64 exec, -1")
    stamp()
    A(f"s_cmp_eq_u32 s{S_HAS1}, 0\ns_cbranch_scc1 L_G_nog1")
    ACC = 16; FB = 80
    V_R = 4
    lg = Cnt(A, "lgkmcnt", 15)
    def g1_reads(n):
        st, ks = n >> 2, n & 3
        slot = st & 3; se = slot >> 1; so = (slot & 1) * SLOT
        b = FB + 16 * (n % 3)
        out = []
        for fi in range(2):
            for hf in range(2):
                out.append(f"ds_read_b64_tr_b16 {vr(b+8+4*fi+2*hf,2)}, v{VW+2*se+fi} offset:{so + ks*4096 + hf*1024}")
            out.append(f"ds_read_b128 {vr(b+4*fi,4)}, v{VX+4*se+ks} offset:{so + fi*4096}")
        return out
    lds_wait(V_R, 2, 1, V_FL, 0, 6)
    stamp()
    for n in (0, 1):
        for t in g1_reads(n): A(t); lg.issue(n)
    for n in range(32):
        st, ks = n >> 2, n & 3
        b = FB + 16 * (n % 3)
        chk = (n + 2 < 32) and ((n + 2) & 3) == 0
        lg.wait("flag" if chk else n)
        lg.wait(n)
        rd = g1_reads(n + 2) if n + 2 < 32 else []
        mf = []
        for fi in range(2):
            for tb in range(2):
                acc = ACC + 16 * (2 * fi + tb)
                c = "0" if n == 0 else vr(acc, 16)
                mf.append(f"v_mfma_f32_32x32x16_bf16 {vr(acc,16)}, {vr(b+8+4*fi,4)}, {vr(b+4*tb,4)}, {c}")
        A(mf[0])
        if ks == 3:
            A(f"v_mov_b32 v7, {st+2}\nds_write_b32 v{V_FRE}, v7"); lg.issue("w")
        if chk:
            lds_check(V_R, 2, ((n + 2) >> 2) + 1, V_FL, 0, 6)
        if (n + 3 < 32) and ((n + 3) & 3) == 0:
            A(f"ds_read_b64 {vr(V_R,2)}, v{V_FL}"); lg.issue("flag")
        for k in range(3):
            for t in rd[2 * k: 2 * k + 2]: A(t); lg.issue(n + 2)
            A(mf[k + 1])
        if n == 5:
            A("s_waitcnt vmcnt(0)")
            flag_store(8, 9, S_UF)
    stamp()
    V_L16 = 3
    A(f"v_lshlrev_b32 v{V_L16}, 4, v0")
    A(f"s_and_b32 s{S_T0}, s{S_WAVE}, 1\ns_lshl_b32 s{S_T1}, s{S_MT}, 1\ns_add_u32 s{S_T0}, s{S_T0}, s{S_T1}")
    A(f"s_lshr_b32 s{S_T1}, s{S_WAVE}, 1\ns_lshl_b32 s{S_T2}, s{S_FC}, 1\ns_add_u32 s{S_T1}, s{S_T1}, s{S_T2}")
    S_HF = 75
    A(f"s_lshl_b32 s{S_HF}, s{S_T0}, 7\ns_lshl_b32 s{S_T2}, s{S_T1}, 2\ns_add_u32 s{S_HF}, s{S_HF}, s{S_T2}\ns_add_u32 s{S_HF}, s{S_HF}, {WS_HFLAG}")
    A(f"s_mul_i32 s{S_T0}, s{S_T0}, 229376\ns_lshl_b32 s{S_T1}, s{S_T1}, 13\ns_add_u32 s{S_T0}, s{S_T0}, s{S_T1}\ns_add_u32 s{S_T0}, s{S_T0}, {WS_HP}\ns_add_u32 s{S_T1}, s{S_T0}, 4096")
    k = 0
    for fi in range(2):
        for tb in range(2):
            acc = ACC + 16 * (2 * fi + tb)
            for bb in range(2):
                d = FB + 4 * k; k += 1
                for q in range(4):
                    A(f"v_cvt_pk_bf16_f32 v{d+q}, v{acc+8*bb+2*q}, v{acc+8*bb+2*q+1}")
                for q in range(4):
                    A(f"v_pk_max_i16 v{d+q}, v{d+q}, 0")
                A(f"buffer_store_dwordx4 {vr(d,4)}, v{V_L16}, s[{R_WS}:{R_WS+3}], s{S_T0 if fi == 0 else S_T1} offen offset:{bb*2048 + tb*1024} sc1")
    A("s_branch L_G_conv")
    A("L_G_nog1:")
    A("s_waitcnt vmcnt(0)")
    flag_store(8, 9, S_UF)
    A(f"v_lshlrev_b32 v{V_L16}, 4, v0")
    if PROF:
        A(f"s_memtime s[{S_ST+2*(NST[0]-2)}:{S_ST+2*(NST[0]-2)+1}]\ns_memtime s[{S_ST+2*(NST[0]-1)}:{S_ST+2*(NST[0]-1)+1}]")
    A("L_G_conv:")
    stamp()
    W2R = 160
    V_RD1 = 10
    A(f"s_lshr_b32 s{S_T0}, s{S_WAVE}, 1\ns_lshl_b32 s{S_T0}, s{S_T0}, 2\ns_add_u32 s{S_T0}, s{S_T0}, {F_RDY}\nv_mov_b32 v{V_RD1}, s{S_T0}")
    def w2_reads(j, ks, dst):
        st = 8 + j; slot = st & 3; se = slot >> 1; so = (slot & 1) * SLOT
        out = []
        for cb in range(2):
            for hf in range(2):
                out.append(f"ds_read_b64_tr_b16 {vr(dst+4*cb+2*hf,2)}, v{VW2+2*se+cb} offset:{so + ks*2048 + hf*1024}")
        return out
    def w2_drain(j):
        lds_wait(V_R, 1, 8 + j + 1, V_RD1, 0, 6)
        for ks in range(4):
            for t in w2_reads(j, ks, W2R + 32 * j + 8 * ks): A(t)
        A(f"s_waitcnt lgkmcnt(0)\nv_mov_b32 v7, {8+j+2}\nds_write_b32 v{V_FRE}, v7")
    VA, VB, V_UE, V_AS = 144, 11, 12, 13
    A(f"s_lshr_b32 s{S_T0}, s{S_WAVE}, 1\ns_mul_i32 s{S_T1}, s{S_T0}, {KCH}\ns_add_u32 s{S_T1}, s{S_T1}, {KCOP + 2*2031 - 512 - 448}")
    A(f"v_and_b32 v8, 15, v0\nv_lshrrev_b32 v9, 4, v0\nv_or_b32 v16, 1, v8\nv_lshlrev_b32 v16, 1, v16\nv_lshlrev_b32 v17, 4, v9\nv_sub_u32 v17, v17, v16")
    A(f"v_and_b32 v16, 1, v8\nv_xor_b32 v16, 1, v16\nv_mul_u32_u24 v16, {KC1}, v16\nv_add_u32 v17, v17, v16\nv_add_u32 v{VA}, s{S_T1}, v17")
    for p in range(1, 4): A(f"v_subrev_u32 v{VA+p}, {1024*p}, v{VA}")
    A(f"s_mul_i32 s{S_T1}, s{S_T0}, {UCH}\ns_add_u32 s{S_T1}, s{S_T1}, {UBUF}")
    A(f"v_lshlrev_b32 v16, 5, v8\nv_lshl_add_u32 v17, v9, 4, v16\nv_add_u32 v{VB}, s{S_T1}, v17")
    A(f"v_lshl_add_u32 v17, v9, 3, v16\nv_add_u32 v17, 480, v17\nv_add_u32 v{V_UE}, s{S_T1}, v17")
    A(f"v_lshrrev_b32 v17, 1, v9\nv_lshl_add_u32 v16, v17, 4, v16\nv_and_b32 v17, 1, v9\nv_lshl_add_u32 v{V_AS}, v17, 9, v16")
    S_AT, S_AF = P_BX, P_BX + 1
    A(f"s_lshl_b32 s{S_T1}, s{S_J}, 1\ns_add_u32 s{S_T1}, s{S_T1}, s{S_T0}")
    A(f"s_lshl_b32 s{S_AT}, s{S_T1}, 12\ns_add_u32 s{S_AT}, s{S_AT}, {WS_AT}")
    A(f"s_and_b32 s{S_T2}, s{S_WAVE}, 1\ns_lshl_b32 s{S_T2}, s{S_T2}, 11\ns_lshl_b32 s{S_AF}, s{S_T1}, 2\ns_add_u32 s{S_AF}, s{S_AF}, s{S_T2}\ns_add_u32 s{S_AF}, s{S_AF}, {WS_AFLAG}")
    def hpub():
        A(f"s_waitcnt vmcnt(0)\ns_cmp_eq_u32 s{S_HAS1}, 0")
        l = A.lab("Lnh")
        A(f"s_cbranch_scc1 {l}")
        flag_store(8, 9, S_HF)
        A(f"{l}:\ns_nop 1")
    lh = A.lab("Lnh")
    pre = (f"s_waitcnt vmcnt(0)\ns_cmp_eq_u32 s{S_HAS1}, 0\ns_cbranch_scc1 {lh}\nv_mov_b32 v8, s{S_TAG}\nv_mov_b32 v9, 0\ns_mov_b64 exec, 1\n"
           f"buffer_store_dword v8, v9, s[{R_WS}:{R_WS+3}], s{S_HF} offen sc1\ns_mov_b64 exec, -1\n{lh}:")
    lds_wait(V_R, 2, 1, V_FL, 32, 6, pre_spin=pre)
    stamp()
    A(f"s_bitcmp1_b32 s{S_WAVE}, 0\ns_cbranch_scc1 L_conv1")
    def emit_conv(cbs, regs):
        nf = max(cbs) + 1
        CA = 16
        lgc = Cnt(A, "lgkmcnt", 15)
        def reads(rho):
            se = regs[rho & 1]
            out = []
            for i in range(nf):
                a = i; bq = i
                p = a >> 1
                o = (512 * (2 * p + 1 - a) + 64 * (7 - rho)) // 4
                ra = se[0][a]; rb = se[1][bq]
                out.append((f"ds_read2_b32 {vr(ra,2)}, v{VA+p} offset0:{o} offset1:{o+1}", ("A", rho, a)))
                out.append((f"ds_read2_b32 {vr(ra+2,2)}, v{VA+p} offset0:{o+2} offset1:{o+3}", ("A", rho, a)))
                out.append((f"ds_read_b128 {vr(rb,4)}, v{VB} offset:{512*bq + 64*(7-rho)}", ("B", rho, bq)))
            return out
        for t, tag in reads(0): A(t); lgc.issue(tag)
        for rho in range(8):
            se = regs[rho & 1]
            mf = [(a, cb - a, cb) for cb in cbs for a in range(cb + 1)]
            mf.sort(key=lambda x: (max(x[0], x[1]), x[2]))
            nxt = reads(rho + 1) if rho < 7 else []
            first = set()
            per = -(-len(nxt) // len(mf)) if nxt else 0
            for i, (a, bq, cb) in enumerate(mf):
                lgc.wait(("A", rho, a)); lgc.wait(("B", rho, bq))
                acc = CA + 4 * cbs.index(cb)
                c = "0" if (rho == 0 and cb not in first) else vr(acc, 4)
                first.add(cb)
                A(f"v_mfma_f32_16x16x32_bf16 {vr(acc,4)}, {vr(se[0][a],4)}, {vr(se[1][bq],4)}, {c}")
                for t, tag in nxt[per * i: per * (i + 1)]: A(t); lgc.issue(tag)
            if rho == 2:
                hpub()
            if rho in (1, 3, 5):
                lgc.clear()
                w2_drain((rho - 1) // 2)
        U = 40
        for i, cb in enumerate(cbs):
            A(f"ds_read_b64 {vr(U+2*i,2)}, v{V_UE} offset:{512*cb}")
        A(f"s_waitcnt lgkmcnt(0)\nv_mov_b32 v7, 1\nds_write_b32 v{V_FRE}, v7 offset:32")
        O = 56
        for i, cb in enumerate(cbs):
            acc = CA + 4 * i
            o = O + 4 * (i >> 1) + 2 * (i & 1)
            for q in range(2):
                A(f"v_cvt_pk_bf16_f32 v72, v{acc+2*q}, v{acc+2*q+1}")
                A(f"v_lshlrev_b32 v74, 16, v{U+2*i+q}\nv_and_b32 v75, 0xffff0000, v{U+2*i+q}\nv_mul_f32 v74, v{V_DSK}, v74\nv_mul_f32 v75, v{V_DSK}, v75\nv_cvt_pk_bf16_f32 v73, v74, v75")
                A(f"v_lshlrev_b32 v74, 16, v72\nv_and_b32 v75, 0xffff0000, v72\nv_lshlrev_b32 v76, 16, v73\nv_and_b32 v77, 0xffff0000, v73")
                A(f"v_pk_add_f32 v[74:75], v[74:75], v[76:77]\nv_cvt_pk_bf16_f32 v{o+q}, v74, v75")
        for i in range(0, len(cbs), 2):
            o = O + 2 * i
            assert cbs[i + 1] == cbs[i] + 1
            A(f"v_permlane16_swap_b32 v{o}, v{o+2}\nv_permlane16_swap_b32 v{o+1}, v{o+3}")
            A(f"buffer_store_dwordx4 {vr(o,4)}, v{V_AS}, s[{R_WS}:{R_WS+3}], s{S_AT} offen offset:{512*cbs[i]} sc1")
    pool0 = [40 + 4 * i for i in range(24)]
    emit_conv([0, 1, 2, 3, 4, 5], [(pool0[0:6], pool0[6:12]), (pool0[12:18], pool0[18:24])])
    A("s_branch L_G2")
    A("L_conv1:")
    pool1 = [24 + 4 * i for i in range(29)] + [148, 152, 156]
    emit_conv([6, 7], [(pool1[0:8], pool1[8:16]), (pool1[16:24], pool1[24:32])])
    A("L_G2:")
    stamp()
    A(f"s_lshl_b32 s{S_T0}, s{S_T}, 7\ns_mul_i32 s{S_T1}, s{S_WAVE}, 28\ns_add_u32 s{S_T0}, s{S_T0}, s{S_T1}\ns_add_u32 s{S_T0}, s{S_T0}, {WS_HFLAG}")
    A(f"v_min_u32 v8, 6, v0\nv_lshl_add_u32 v8, v8, 2, s{S_T0}")
    gpoll([(9, 1, 8, 0)], 6)
    flag_store(8, 9, S_AF)
    stamp()
    V_L16B = 14
    A(f"v_add_u32 v{V_L16B}, 4096, v{V_L16}")
    S_HB = 18
    A(f"s_mul_i32 s{S_T0}, s{S_T}, 229376\ns_mul_i32 s{S_T1}, s{S_WAVE}, {28*2048}\ns_add_u32 s{S_T0}, s{S_T0}, s{S_T1}\ns_add_u32 s{S_T0}, s{S_T0}, {WS_HP}")
    for j in range(7):
        A(f"s_add_u32 s{S_T1}, s{S_ROT2}, {j}\ns_cmp_ge_u32 s{S_T1}, 7\ns_cselect_b32 s{S_T2}, 7, 0\ns_sub_u32 s{S_T1}, s{S_T1}, s{S_T2}\ns_lshl_b32 s{S_T1}, s{S_T1}, 13\ns_add_u32 s{S_HB+j}, s{S_T1}, s{S_T0}")
    ACC = 16; WL = 80; NWL = 2
    hslots = [96 + 8 * i for i in range(5)] + [144, 152]
    NH = len(hslots)
    vm = Cnt(A, "vmcnt", 63); vm.issue("flag")
    lg = Cnt(A, "lgkmcnt", 15)
    def hload(n):
        j, ks = n >> 2, n & 3
        d = hslots[n % NH]
        out = []
        for tb in range(2):
            off = ks * 2048 + tb * 1024
            out.append(f"buffer_load_dwordx4 {vr(d+4*tb,4)}, v{V_L16 if off < 4096 else V_L16B}, s[{R_WS}:{R_WS+3}], s{S_HB+j} offen offset:{off & 4095} sc1")
        return out
    for n in range(NH):
        for t in hload(n): A(t); vm.issue(n)
    for n in range(28):
        j, ks = n >> 2, n & 3
        nn = n + 1
        rd = []
        if 12 <= nn < 28:
            if (nn & 3) == 0:
                lg.clear()
                lds_wait(V_R, 1, 8 + (nn >> 2) + 1, V_RD1, 0, 6)
            rd = w2_reads(nn >> 2, nn & 3, WL + 8 * (nn % NWL))
        wsrc = (W2R + 32 * j + 8 * ks) if n < 12 else (WL + 8 * (n % NWL))
        hs = hslots[n % NH]
        lg.wait(n)
        vm.wait(n)
        mf = []
        for cb in range(2):
            for tb in range(2):
                acc = ACC + 16 * (2 * cb + tb)
                c = "0" if n == 0 else vr(acc, 16)
                mf.append(f"v_mfma_f32_32x32x16_bf16 {vr(acc,16)}, {vr(wsrc+4*cb,4)}, {vr(hs+4*tb,4)}, {c}")
        A(mf[0])
        for t in rd[0:2]: A(t); lg.issue(nn)
        A(mf[1])
        for t in rd[2:4]: A(t); lg.issue(nn)
        A(mf[2]); A(mf[3])
        if n + NH < 28:
            for t in hload(n + NH): A(t); vm.issue(n + NH)
    stamp()
    A(f"v_and_b32 v8, 31, v0\nv_lshrrev_b32 v9, 5, v0\nv_and_b32 v6, 7, v0\nv_xor_b32 v9, v9, v6\nv_lshlrev_b32 v9, 4, v9\nv_lshl_add_u32 v9, v8, 8, v9\nv_add_u32 v9, s{S_WB}, v9")
    for q in range(4):
        A(f"v_xor_b32 v{80+q}, {32*q}, v9\nv_add_u32 v{84+q}, {3*SLOT}, v{80+q}")
    for cb in range(2):
        for tb in range(2):
            acc = ACC + 16 * (2 * cb + tb)
            for q in range(4):
                A(f"ds_write_b128 v{(84 if tb == 0 else 80)+q}, {vr(acc+4*q,4)} offset:{128*cb}")
    A(f"v_lshrrev_b32 v8, 3, v0\nv_lshlrev_b32 v9, 1, v6\nv_xor_b32 v9, v9, v8\nv_lshlrev_b32 v9, 4, v9\nv_lshl_add_u32 v9, v8, 8, v9")
    A(f"s_and_b32 s{S_T0}, s{S_WAVE}, 1\ns_lshl_b32 s{S_T0}, s{S_T0}, 12\ns_cmp_lt_u32 s{S_WAVE}, 2\ns_cselect_b32 s{S_T1}, {3*SLOT}, 0\ns_add_u32 s{S_T0}, s{S_T0}, s{S_T1}")
    A(f"v_add_u32 v88, s{S_T0}, v9\nv_xor_b32 v89, 16, v88")
    A(f"v_xor_b32 v9, v6, v8\nv_lshlrev_b32 v9, 4, v9\nv_lshl_add_u32 v9, v8, 7, v9\ns_lshl_b32 s{S_T0}, s{S_WAVE}, 11\ns_add_u32 s{S_T0}, s{S_T0}, {PA}\nv_add_u32 v90, s{S_T0}, v9")
    A(f"s_lshl_b32 s{S_T0}, s{S_WAVE}, 6\ns_add_u32 s{S_T0}, s{S_T0}, {OMG}\nv_lshl_add_u32 v91, v8, 2, s{S_T0}")
    A(f"v_lshlrev_b32 v9, 4, v6\nv_lshl_add_u32 v92, v8, 10, v9")
    A(f"s_lshl_b32 s{S_T0}, s{S_T}, 16\ns_lshl_b32 s{S_T1}, s{S_WAVE}, 14\ns_add_u32 s{S_T0}, s{S_T0}, s{S_T1}\ns_lshl_b32 s{S_T1}, s{S_C}, 7\ns_add_u32 s{S_T0}, s{S_T0}, s{S_T1}\ns_add_u32 s{S_T1}, s{S_T0}, 8192")
    A("s_waitcnt lgkmcnt(0)\ns_barrier")
    stamp()
    R = 96
    for it in range(2):
        for w in range(4):
            for e in range(2):
                A(f"ds_read_b128 {vr(R+32*it+8*w+4*e,4)}, v{88+e} offset:{8192*w + 2048*it}")
        A(f"ds_read_b128 {vr(16+4*it,4)}, v90 offset:{1024*it}\nds_read_b32 v{24+it}, v91 offset:{32*it}")
    for it in range(2):
        A(f"s_waitcnt lgkmcnt({10 if it == 0 else 0})")
        b = R + 32 * it
        for q in range(4):
            A(f"v_pk_add_f32 {vr(b+2*q,2)}, {vr(b+2*q,2)}, {vr(b+8+2*q,2)}\nv_pk_add_f32 {vr(b+16+2*q,2)}, {vr(b+16+2*q,2)}, {vr(b+24+2*q,2)}")
        for q in range(4):
            A(f"v_pk_add_f32 {vr(b+2*q,2)}, {vr(b+2*q,2)}, {vr(b+16+2*q,2)}")
        for q in range(4):
            x = b + 2 * q
            A(f"v_cvt_pk_bf16_f32 v28, v{x}, v{x+1}\nv_lshlrev_b32 v30, 16, v28\nv_and_b32 v31, 0xffff0000, v28")
            A(f"v_mul_f32 v30, v{24+it}, v30\nv_mul_f32 v31, v{24+it}, v31\nv_cvt_pk_bf16_f32 v28, v30, v31")
            A(f"v_lshlrev_b32 v30, 16, v28\nv_and_b32 v31, 0xffff0000, v28\nv_lshlrev_b32 v32, 16, v{16+4*it+q}\nv_and_b32 v33, 0xffff0000, v{16+4*it+q}")
            A(f"v_pk_add_f32 v[30:31], v[30:31], v[32:33]\nv_cvt_pk_bf16_f32 v{36+4*it+q}, v30, v31")
        A(f"buffer_store_dwordx4 {vr(36+4*it,4)}, v92, s[{R_OUT}:{R_OUT+3}], s{S_T0 if it == 0 else S_T1} offen")
    stamp()
    stamp_flush(1, 2)
    A("s_endpgm")
    flush_slow()
gwave()
A("L_exit:\ns_endpgm")

hdr = open("cdna_kernels/" + NAME + ".s.ref").read().split("; Override launch geometry")[0]
body = A.finish()
out = hdr + "; Generated by the author's own generator script (hand-designed schedule).\n"
out += "; @launch grid=(256,1,1) block=(512,1,1) lds=163840\n"
out += '.amdgcn_target "amdgcn-amd-amdhsa--gfx950"\n.text\n'
out += f".globl {NAME}_kernel\n.p2align 8\n.type {NAME}_kernel,@function\n"
out += "\n".join(("" if (l.endswith(":") or l.startswith(".")) else "    ") + l for l in body) + "\n"
out += f""".section .rodata,"a"
.p2align 6
.amdhsa_kernel {NAME}_kernel
  .amdhsa_next_free_vgpr 256
  .amdhsa_next_free_sgpr 102
  .amdhsa_accum_offset 256
  .amdhsa_group_segment_fixed_size 0
  .amdhsa_kernarg_size 128
  .amdhsa_user_sgpr_count 2
  .amdhsa_user_sgpr_kernarg_segment_ptr 1
  .amdhsa_system_sgpr_workgroup_id_x 1
.end_amdhsa_kernel
"""
dst = [a for a in sys.argv[1:] if not a.startswith("--")]
open(dst[0] if dst else "cdna_kernels/" + NAME + ".s", "w").write(out)
print("lines", len(body), "nops inserted", A.nops)
```
